```python
import torch

def _softmax(x, axis=-1):
    return torch.softmax(x, dim=axis)

def _gelu(x):
    return torch.nn.functional.gelu(x, approximate='tanh')

def _silu(x):
    return torch.nn.functional.silu(x)

def _sigmoid(x):
    return torch.sigmoid(x)

def _layernorm(x, axis=-1, eps=1e-05):
    m = x.mean(dim=axis, keepdim=True)
    v = x.var(dim=axis, keepdim=True, unbiased=False)
    return (x - m) / torch.sqrt(v + eps)

def _scatter_add(tgt, idx, src, axis=0):
    return tgt.clone().index_add_(axis, idx, src)

def _segment_sum(src, seg, n):
    out = torch.zeros((n,) + src.shape[1:], dtype=src.dtype)
    return out.index_add_(0, seg, src)

def _pad(x, pw):
    flat = tuple((v for pair in reversed(pw) for v in pair))
    return torch.nn.functional.pad(x, flat)
kernel_name = 'adaLN_cond__gqa_block_cached__mixer_gmlp__prompt'

def setup_inputs():

    _w = lambda a: (lambda t: t.to(torch.bfloat16) if t.is_floating_point() else t)(torch.as_tensor(a))

    def _A_setup():
        B, Sq, D = (1, 2048, 448)
        Hq, Hkv, Sk, Dh = (16, 8, 2048, 256)
        assert Hq % Hkv == 0, (Hq, Hkv)
        return {'x': _w((lambda *s: torch.randn(*s, dtype=torch.bfloat16) * 0.05)(B, Sq, D)), 'k_cache': _w((lambda *s: torch.randn(*s, dtype=torch.bfloat16) * 3.2)(B, Hkv, Sk, Dh)), 'v_cache': _w((lambda *s: torch.randn(*s, dtype=torch.bfloat16) * 0.4)(B, Hkv, Sk, Dh)), 'wq': _w((lambda *s: torch.randn(*s, dtype=torch.bfloat16) * 3.2)(D, Hq * Dh) * D ** (-0.5)), 'wo': _w((lambda *s: torch.randn(*s, dtype=torch.bfloat16) * 0.4)(Hq * Dh, D) * (Hq * Dh) ** (-0.5))}
    _A_in = _A_setup()

    def _B_setup():
        B, S, D, F = (1, 2048, 448, 1792)
        Fh = F // 2
        return {'x': _w((lambda *s: torch.randn(*s, dtype=torch.bfloat16) * 0.05)(B, S, D)), 'w_in': _w((lambda *s: torch.randn(*s, dtype=torch.bfloat16) * 0.8)(D, 2 * Fh)), 'w_sp': _w(0.01 * (lambda *s: torch.randn(*s, dtype=torch.bfloat16) * 0.8)(S, S)), 'b_sp': _w(1.0 + 0.01 * (lambda *s: torch.randn(*s, dtype=torch.bfloat16) * 0.05)(S)), 'w_out': _w((lambda *s: torch.randn(*s, dtype=torch.bfloat16) * 0.05)(Fh, D))}
    _B_in = _B_setup()
    return {'A_x': _A_in['x'], 'A_k_cache': _A_in['k_cache'], 'A_v_cache': _A_in['v_cache'], 'A_wq': _A_in['wq'], 'A_wo': _A_in['wo'], 'B_x': _B_in['x'], 'B_w_in': _B_in['w_in'], 'B_w_sp': _B_in['w_sp'], 'B_b_sp': _B_in['b_sp'], 'B_w_out': _B_in['w_out'], 'c': _w((lambda *s: torch.randn(*s, dtype=torch.bfloat16) * 0.1)(1, 448) * 8.0), 'w_mod': _w((lambda *s: torch.randn(*s, dtype=torch.bfloat16) * 0.1)(448, 6 * 448) * 448 ** (-0.5) * 8.0)}

def reference(A_x, A_k_cache, A_v_cache, A_wq, A_wo, B_x, B_w_in, B_w_sp, B_b_sp, B_w_out, c, w_mod):

    def _A_ref(x, k_cache, v_cache, wq, wo):
        B, Sq, D = x.shape
        Hq, Dh = (16, 256)
        Hkv = k_cache.shape[1]
        rep = Hq // Hkv
        q = (lambda x, *d: x.permute(*d))((x @ wq).reshape(B, Sq, Hq, Dh), 0, 2, 1, 3)
        k = (lambda x, n, axis: torch.repeat_interleave(x, n, dim=axis))(k_cache, rep, axis=1)
        v = (lambda x, n, axis: torch.repeat_interleave(x, n, dim=axis))(v_cache, rep, axis=1)
        scores = torch.einsum('bhqd,bhkd->bhqk', q, k) * Dh ** (-0.5)
        p = _softmax(scores, axis=-1)
        o = torch.einsum('bhqk,bhkd->bhqd', p, v)
        return (lambda x, *d: x.permute(*d))(o, 0, 2, 1, 3).reshape(B, Sq, Hq * Dh) @ wo

    def _B_ref(x, w_in, w_sp, b_sp, w_out):
        B, S, D = x.shape
        F = w_in.shape[-1]
        Fh = F // 2
        z = _gelu(torch.einsum('bsd,df->bsf', x, w_in))
        z1 = z[..., :Fh].clone()
        z2 = _layernorm(z[..., Fh:], axis=-1)
        g = torch.einsum('ts,bsf->btf', w_sp, z2) + b_sp[None, :, None]
        return torch.einsum('bsf,fd->bsd', z1 * g, w_out)
    x = A_x
    mod = (_silu(c) @ w_mod).reshape(c.shape[0], 6, 1, -1)
    sa, ca, ga, sb, cb, gb = (mod[:, 0].clone(), mod[:, 1].clone(), mod[:, 2].clone(), mod[:, 3].clone(), mod[:, 4].clone(), mod[:, 5].clone())
    h = _layernorm(x, axis=-1) * (1 + ca) + sa
    x = x + ga * _A_ref(h, A_k_cache, A_v_cache, A_wq, A_wo)
    h = _layernorm(x, axis=-1) * (1 + cb) + sb
    x = x + gb * _B_ref(h, B_w_in, B_w_sp, B_b_sp, B_w_out)
    return x
```

```python
import re

REG_RE = re.compile(r'^(-|abs\(|\|)?([vas])(\d+|\[(\d+):(\d+)\])\)?\|?$')

TRANS = ('v_exp_f32', 'v_log_f32', 'v_rcp_f32', 'v_rsq_f32', 'v_sqrt_f32', 'v_sin_f32', 'v_cos_f32',
         'v_rcp_iflag_f32')


def regs_of(tok):
    tok = tok.strip()
    if tok in ('vcc', 'exec'):
        return [(tok, 0)]
    if tok in ('vcc_lo', 'vcc_hi'):
        return [('vcc', 0)]
    if tok == 'm0':
        return [('m0', 0)]
    if tok == 'scc':
        return [('scc', 0)]
    m = REG_RE.match(tok)
    if not m:
        return []
    f = m.group(2)
    if m.group(4) is not None:
        return [(f, i) for i in range(int(m.group(4)), int(m.group(5)) + 1)]
    return [(f, int(m.group(3)))]


class Ins:
    __slots__ = ('text', 'op', 'kind', 'rd', 'wr', 'ops', 'wait_lgkm', 'wait_vm', 'nop', 'passes',
                 'srcc', 'srcab', 'comment', 'cost', 'man_vm', 'man_lgkm', 'tag', 'vmtag', 'need_tags')

    def __init__(self, text, comment=None):
        self.text = text
        self.comment = comment
        self.wait_lgkm = None
        self.wait_vm = None
        self.nop = 0
        self.passes = 0
        self.srcc = []
        self.srcab = []
        self.man_vm = None
        self.man_lgkm = None
        self.tag = None
        self.vmtag = None
        self.need_tags = None
        if text.startswith('WAITVM'):
            toks = text.split()[1:]
            self.need_tags = [x for x in toks if x != 'lgkm0']
            self.op = 's_waitcnt'
            self.kind = 'wait'
            self.rd, self.wr, self.ops = [], [], []
            self.cost = 1
            if 'lgkm0' in toks:
                self.man_lgkm = 0
            return
        if ' @' in text:
            text, tg = text.rsplit(' @', 1)
            self.text = text
            self.vmtag = tg.strip()
        t = text.strip()
        if t.endswith(':') or t.startswith('.') or t == '':
            self.op = 'label' if t.endswith(':') else 'dir'
            self.kind = 'label'
            self.rd, self.wr, self.ops = [], [], []
            self.cost = 0
            return
        parts = t.split(None, 1)
        op = parts[0]
        self.op = op
        rest = parts[1] if len(parts) > 1 else ''
        ops = []
        cur = ''
        depth = 0
        for ch in rest:
            if ch in '[(':
                depth += 1
            if ch in '])':
                depth -= 1
            if ch == ',' and depth == 0:
                ops.append(cur.strip())
                cur = ''
            else:
                cur += ch
        if cur.strip():
            ops.append(cur.strip())
        mods = []
        if ops:
            last = ops[-1].split()
            ops[-1] = last[0]
            mods = last[1:]
        self.ops = ops
        rd, wr = [], []
        R = regs_of
        self.cost = 1
        if op.startswith('v_mfma'):
            self.kind = 'mfma'
            wr = R(ops[0])
            self.srcab = R(ops[1]) + R(ops[2])
            self.srcc = R(ops[3])
            rd = self.srcab + self.srcc
            self.passes = 8 if '32x32x16' in op else (4 if '16x16x32' in op else 16)
            self.cost = 2
        elif op.startswith('v_cmp'):
            self.kind = 'valu'
            wr = R(ops[0])
            for o in ops[1:]:
                rd += R(o)
            if op.startswith('v_cmpx'):
                wr += [('exec', 0)]
        elif op.startswith('v_permlane') and 'swap' in op:
            self.kind = 'valu'
            rd = R(ops[0]) + R(ops[1])
            wr = list(rd)
        elif op.startswith('v_'):
            base = op.replace('_e32', '').replace('_e64', '').replace('_dpp', '')
            self.kind = 'trans' if base in TRANS else 'valu'
            if self.kind == 'trans':
                self.cost = 2
            wr = R(ops[0])
            srcs = ops[1:]
            if base in ('v_add_co_u32', 'v_sub_co_u32', 'v_addc_co_u32', 'v_subb_co_u32', 'v_mad_u64_u32',
                        'v_div_scale_f32'):
                wr += R(ops[1])
                srcs = ops[2:]
            for o in srcs:
                rd += R(o)
            if base in ('v_fmac_f32', 'v_dot2c_f32_bf16', 'v_writelane_b32', 'v_pk_fmac_f16') or '_dpp' in op \
                    or any(m.startswith(('row_', 'quad_perm', 'wave_')) for m in mods):
                rd += R(ops[0])
            if '_dpp' in op or any(m.startswith(('row_', 'quad_perm', 'wave_')) for m in mods):
                self.tag = 'dpp'
            if base == 'v_div_fmas_f32':
                rd += [('vcc', 0)]
        elif op.startswith('ds_'):
            self.kind = 'lds'
            if op.startswith(('ds_read', 'ds_bpermute', 'ds_permute', 'ds_swizzle')):
                wr = R(ops[0])
                for o in ops[1:]:
                    rd += R(o)
            else:
                for o in ops:
                    rd += R(o)
        elif op.startswith(('buffer_', 'global_')):
            self.kind = 'vmem'
            if op in ('buffer_inv', 'buffer_wbl2'):
                pass
            elif 'lds' in mods or '_lds_' in op:
                for o in ops:
                    rd += R(o)
                rd += [('m0', 0)]
                self.tag = 'dma'
            elif 'load' in op:
                wr = R(ops[0])
                for o in ops[1:]:
                    rd += R(o)
            elif 'atomic' in op:
                for o in ops:
                    rd += R(o)
                if 'sc0' in mods:
                    wr = R(ops[0])
                self.tag = 'store'
            else:
                for o in ops:
                    rd += R(o)
                self.tag = 'store'
        elif op.startswith('s_'):
            if op == 's_waitcnt':
                self.kind = 'wait'
                m = re.search(r'vmcnt\((\d+)\)', t)
                if m:
                    self.man_vm = int(m.group(1))
                m = re.search(r'lgkmcnt\((\d+)\)', t)
                if m:
                    self.man_lgkm = int(m.group(1))
            elif op == 's_nop':
                self.kind = 'nop'
                self.cost = int(ops[0], 0) + 1
            elif op in ('s_barrier', 's_endpgm', 's_sleep', 's_setprio'):
                self.kind = 'misc'
            elif op.startswith(('s_cbranch', 's_branch')):
                self.kind = 'branch'
                if 'vcc' in op:
                    rd = [('vcc', 0)]
                if 'scc' in op:
                    rd = [('scc', 0)]
            elif op.startswith(('s_load', 's_buffer_load', 's_memtime', 's_memrealtime', 's_atomic')):
                self.kind = 'smem'
                wr = R(ops[0])
                for o in ops[1:]:
                    rd += R(o)
            elif op.startswith('s_cmp'):
                self.kind = 'salu'
                for o in ops:
                    rd += R(o)
                wr = [('scc', 0)]
            else:
                self.kind = 'salu'
                wr = R(ops[0])
                for o in ops[1:]:
                    rd += R(o)
                if 'saveexec' in op:
                    wr += [('exec', 0)]
                if op in ('s_addk_i32', 's_mulk_i32'):
                    rd += R(ops[0])
        else:
            raise ValueError('unknown instruction: ' + text)
        self.rd, self.wr = rd, wr

    def states(self):
        if self.kind == 'label':
            return 0
        if self.kind == 'nop':
            return self.cost
        return 1


class Prog:
    def __init__(self, name):
        self.name = name
        self.segs = [('lin', [])]
        self.side = []
        self.cur = self.segs[-1][1]
        self.auto_nop_log = []

    def __call__(self, text, comment=None):
        for line in text.split('\n'):
            line = line.strip()
            if not line:
                continue
            c = comment
            if ';' in line:
                line, c = line.split(';', 1)
                line = line.strip()
                if not line:
                    continue
            ins = Ins(line, c)
            self.cur.append(ins)
        return self

    def add(self, ins):
        self.cur.append(ins)

    def begin_loop(self):
        self.segs.append(('loop', []))
        self.cur = self.segs[-1][1]

    def end_loop(self):
        self.segs.append(('lin', []))
        self.cur = self.segs[-1][1]

    def begin_side(self):
        self._saved = self.cur
        self.side.append([])
        self.cur = self.side[-1]

    def end_side(self):
        self.cur = self._saved

    def trace(self, reps=3):
        t = []
        for kind, lst in self.segs:
            if kind == 'lin':
                t += lst
            else:
                for _ in range(reps):
                    t += lst
        return t

    def _auto_wait(self, trace):
        lg, vm, vmt = [], [], []
        smem_out = []
        for ins in trace:
            if ins.kind == 'label':
                continue
            touched = set(ins.rd) | set(ins.wr)
            if smem_out and any(r in touched for r in smem_out):
                ins.wait_lgkm = 0
            for q, attr in ((lg, 'wait_lgkm'), (vm, 'wait_vm')):
                need = None
                for idx in range(len(q) - 1, -1, -1):
                    d = q[idx]
                    if d and (d & touched):
                        need = len(q) - 1 - idx
                        break
                if need is not None:
                    if attr == 'wait_lgkm':
                        if smem_out:
                            need = 0
                        need = min(need, 15)
                    else:
                        need = min(need, 63)
                    cur = getattr(ins, attr)
                    if cur is None or need < cur:
                        setattr(ins, attr, need)
            if ins.need_tags is not None:
                for idx in range(len(vm) - 1, -1, -1):
                    if vmt[idx] in ins.need_tags:
                        need = min(63, len(vm) - 1 - idx)
                        if ins.man_vm is None or need < ins.man_vm:
                            ins.man_vm = need
                        break
            wl = ins.wait_lgkm
            wv = ins.wait_vm
            if ins.kind == 'wait':
                if ins.man_lgkm is not None:
                    wl = ins.man_lgkm if wl is None else min(wl, ins.man_lgkm)
                if ins.man_vm is not None:
                    wv = ins.man_vm if wv is None else min(wv, ins.man_vm)
            if wl is not None:
                if wl == 0:
                    smem_out = []
                    lg.clear()
                elif not smem_out:
                    del lg[:max(0, len(lg) - wl)]
            if wv is not None:
                k = max(0, len(vm) - wv)
                del vm[:k]
                del vmt[:k]
            if ins.kind == 'lds':
                lg.append(set(ins.wr))
            elif ins.kind == 'smem':
                smem_out += ins.wr
                lg.append(set())
            elif ins.kind == 'vmem':
                vm.append(set(ins.wr))
                vmt.append(ins.vmtag)
                if len(vm) > 63:
                    print('WARNING: more than 63 vmem outstanding at', ins.text)

    def _hazards(self, trace, fix=True):
        hist = []
        pos = 0
        W = 24
        for ins in trace:
            if ins.kind == 'label':
                continue
            pre = ins.nop + (1 if (ins.wait_lgkm is not None or ins.wait_vm is not None) and ins.kind != 'wait' else 0)
            here = pos + pre
            need_extra = 0
            rd, wr = set(ins.rd), set(ins.wr)
            isv = ins.kind in ('valu', 'trans')
            for (p, ppos) in hist:
                dist = here - ppos - 1
                req = 0
                pw = set(p.wr)
                pv = p.kind in ('valu', 'trans')
                if p.kind == 'mfma':
                    n = {4: (8, 6, 3), 8: (12, 10, 7), 16: (20, 18, 15)}[p.passes]
                    if ins.kind == 'mfma':
                        if pw & set(ins.srcab):
                            req = max(req, n[0])
                        if pw & set(ins.srcc):
                            if list(p.wr) == list(ins.srcc) and p.passes == ins.passes:
                                pass
                            else:
                                req = max(req, n[1])
                        elif pw & wr:
                            req = max(req, n[1])
                    elif ins.kind in ('valu', 'trans', 'lds', 'vmem'):
                        if pw & (rd | wr):
                            req = max(req, n[0])
                        if isv and (set(p.srcc) & wr):
                            req = max(req, n[2])
                if pv:
                    vw = {r for r in pw if r[0] in 'va' and len(r[0]) == 1}
                    sw = {r for r in pw if r[0] in ('s', 'vcc')}
                    if ins.kind == 'mfma' and (vw & rd):
                        req = max(req, 2)
                    if ins.kind == 'mfma' and ('exec', 0) in pw:
                        req = max(req, 4)
                    if p.kind == 'trans' and isv and (vw & rd):
                        req = max(req, 1)
                    if isv and ins.tag == 'dpp' and (vw & rd):
                        req = max(req, 2)
                    if isv and ins.op.startswith('v_permlane') and (vw & rd):
                        req = max(req, 2)
                    if isv and ins.op.startswith(('v_readlane', 'v_readfirstlane')) and (vw & rd):
                        req = max(req, 1)
                    if isv and (sw & rd):
                        req = max(req, 4 if ins.op.startswith(('v_readlane', 'v_writelane', 'v_div_fmas')) else 2)
                    if ins.kind == 'vmem' and (sw & rd):
                        req = max(req, 5)
                    if ins.kind == 'salu' and (sw & rd):
                        req = max(req, 1)
                    if ('exec', 0) in pw and isv and (ins.tag == 'dpp' or ins.op.startswith(('v_permlane', 'v_readlane', 'v_readfirstlane'))):
                        req = max(req, 5)
                if p.kind == 'salu' and ('m0', 0) in pw and ('m0', 0) in rd and ins.kind in ('vmem', 'lds'):
                    req = max(req, 1)
                if p.kind == 'vmem' and p.tag == 'store' and ('x4' in p.op or 'x3' in p.op):
                    data = set(regs_of(p.ops[0] if p.op.startswith('buffer') else p.ops[1]))
                    if data & wr:
                        req = max(req, 2 if isv else 1)
                if req > dist:
                    need_extra = max(need_extra, req - dist)
            if need_extra:
                if not fix:
                    raise RuntimeError('hazard at: ' + ins.text)
                ins.nop += need_extra
                self.auto_nop_log.append((ins.text, need_extra))
                here += need_extra
            hist.append((ins, here + ins.states() - 1))
            pos = here + ins.states()
            while hist and pos - hist[0][1] > W:
                hist.pop(0)

    def finalize(self):
        tr = self.trace()
        self._auto_wait(tr)
        self._auto_wait(tr)
        self._hazards(tr)
        for s in self.side:
            self._auto_wait(s)
            self._hazards(s)

    @staticmethod
    def _fmt(ins, out):
        n = ins.nop
        while n > 0:
            k = min(n, 16)
            out.append('    s_nop %d' % (k - 1))
            n -= k
        if ins.kind != 'wait' and (ins.wait_lgkm is not None or ins.wait_vm is not None):
            w = []
            if ins.wait_vm is not None:
                w.append('vmcnt(%d)' % ins.wait_vm)
            if ins.wait_lgkm is not None:
                w.append('lgkmcnt(%d)' % ins.wait_lgkm)
            out.append('    s_waitcnt ' + ' '.join(w))
        if ins.kind == 'label':
            out.append(ins.text)
        elif ins.need_tags is not None:
            w = []
            if ins.man_vm is not None:
                w.append('vmcnt(%d)' % ins.man_vm)
            if ins.man_lgkm is not None:
                w.append('lgkmcnt(%d)' % ins.man_lgkm)
            out.append('    s_waitcnt ' + ' '.join(w) if w else '    s_nop 0')
        else:
            out.append('    ' + ins.text)

    def text(self):
        out = []
        for kind, lst in self.segs:
            for ins in lst:
                self._fmt(ins, out)
        for s in self.side:
            for ins in s:
                self._fmt(ins, out)
        return '\n'.join(out) + '\n'

    def max_regs(self):
        mv = ma = ms = -1
        allins = self.trace(1) + [i for s in self.side for i in s]
        for ins in allins:
            for f, n in ins.rd + ins.wr:
                if f == 'v':
                    mv = max(mv, n)
                elif f == 'a':
                    ma = max(ma, n)
                elif f == 's':
                    ms = max(ms, n)
        return mv, ma, ms


def kernel_text(prog, extra_dirs=''):
    prog.finalize()
    mv, ma, ms = prog.max_regs()
    acc_off = max(4, (mv + 1 + 3) // 4 * 4)
    nfv = acc_off + ma + 1 if ma >= 0 else mv + 1
    body = prog.text()
    name = prog.name
    code = f""".text
.globl {name}
.p2align 8
.type {name},@function
{name}:
{body}"""
    desc = f""".section .rodata,"a"
.p2align 6
.amdhsa_kernel {name}
  .amdhsa_next_free_vgpr {nfv}
  .amdhsa_next_free_sgpr {max(ms + 1, 16)}
  .amdhsa_accum_offset {acc_off}
  .amdhsa_group_segment_fixed_size 0
  .amdhsa_kernarg_size 120
  .amdhsa_user_sgpr_count 2
  .amdhsa_user_sgpr_kernarg_segment_ptr 1
  .amdhsa_system_sgpr_workgroup_id_x 1
{extra_dirs}.end_amdhsa_kernel
"""
    return code, desc


def vr(b, n=1, f='v'):
    return f'{f}{b}' if n == 1 else f'{f}[{b}:{b + n - 1}]'


def ar(b, n=1):
    return vr(b, n, 'a')


def sr(b, n=1):
    return vr(b, n, 's')


def interleave(prog, mfmas, gaps, pre=None):
    for i, m in enumerate(mfmas):
        if pre and i in pre:
            for t in pre[i]:
                prog(t)
        prog(m)
        for t in gaps[i]:
            prog(t)


def spread(gaps, ops, g0, g1):
    costs = [Ins(o).cost for o in ops]
    total = sum(costs)
    n = g1 - g0
    acc = 0.0
    for o, c in zip(ops, costs):
        g = g0 + min(n - 1, int((acc + c / 2.0) * n / total))
        gaps[g].append(o)
        acc += c
```

```python
import sys
sys.path.insert(0, 'work')
from asmgen import kernel_text
import k_att

HEADER = open('adaLN_cond__gqa_block_cached__mixer_gmlp__prompt.s.ref').read().split('; Override launch')[0]

VERBOSE = False

def make(kernels, path):
    lines = [HEADER.rstrip()]
    for prog, grid, block, lds in kernels:
        lines.append(f'; @launch kernel={prog.name} grid=({grid},1,1) block=({block},1,1) lds={lds}')
    lines.append('.amdgcn_target "amdgcn-amd-amdhsa--gfx950"')
    codes, descs, seen = [], [], set()
    for prog, *_ in kernels:
        if prog.name in seen:
            continue
        seen.add(prog.name)
        c, d = kernel_text(prog)
        codes.append(c)
        descs.append(d)
        if prog.auto_nop_log:
            print(prog.name, 'auto nops:', len(prog.auto_nop_log))
            if VERBOSE:
                for t, n in prog.auto_nop_log[:60]:
                    print('   ', n, t)
    open(path, 'w').write('\n'.join(lines) + '\n' + '\n'.join(codes) + '\n' + '\n'.join(descs))

if __name__ == '__main__':
    dbg = sys.argv[2] if len(sys.argv) > 2 else None
    for e in sys.argv[3:]:
        if e.startswith('delta='):
            k_att.DELTA = float(e[6:])
        else:
            k_att.EXP.add(e)
    make([(k_att.build(dbg), 256, 256, k_att.LDS_ATT)], sys.argv[1])
```

```python
import struct
from asmgen import Prog, Ins, vr, ar, sr, spread
from layout import *


def f2u(x):
    return struct.unpack('<I', struct.pack('<f', x))[0]


PST = 1040
BUF = 32 * PST
KB = [0, BUF]
VB = [2 * BUF, 3 * BUF]
XR = 4 * BUF
LDS_ATT = 163840

O0 = 0
S_ = 128
P_ = 192
RING = 208
NRING = 6
T_ = 232
NM = 240
L_ = 242
TS = 244
vKA, vVA0, vVA1, vDMA = 246, 247, 248, 249
vMX = 250
vWOD, vWOA, vL16 = 251, 252, 253
vX0, vX1 = 254, 255
O1 = 0
Q_ = 128

sKSRD, sVSRD, sWQ, sWO, sH, sPART = 8, 12, 16, 20, 24, 28
sW = 3
sWM = 40
sKO, sKO2, sVO, sVO2 = 41, 42, 43, 44
sC, sNC, sTHR, sND = 45, 46, 47, 48
sCNT = 49
sT0, sT1, sT2, sT3 = 50, 51, 52, 53
sWM4 = 54
sWM8 = 55
sRET = 56

CSCALE = 1.4426950408889634 / 16.0
DELTA = 32.0
THR = 2.0 ** 64


def Sreg(par, qs):
    return S_ + par * 32 + qs * 16


def Preg(qs, s):
    return P_ + qs * 8 + s * 4


def Oreg(qs, db):
    return (vr(O0 + 16 * db, 16) if qs == 0 else ar(O1 + 16 * db, 16))


def Qreg(qs, j):
    return ar(Q_ + qs * 64 + 4 * j, 4)


def sm_ops(par, s):
    pairs = [(qs, i) for i in range(4) for qs in range(2)]
    F, E, A = [], [], []
    for n, (qs, i) in enumerate(pairs):
        t0 = T_ + 2 * (n % 4)
        t1 = t0 + 1
        s0 = Sreg(par, qs) + 8 * s + 2 * i
        F.append([f'v_fma_f32 v{t0}, v{s0}, s{sC}, v{NM + qs}', f'v_fma_f32 v{t1}, v{s0 + 1}, s{sC}, v{NM + qs}'])
        E.append([f'v_exp_f32 v{t0}, v{t0}', f'v_exp_f32 v{t1}, v{t1}'])
        a = []
        if i == 0:
            a.append(f'v_add_f32 v{TS + qs}, v{t0}, v{t1}')
        else:
            a.append(f'v_add_f32 v{TS + qs}, v{TS + qs}, v{t0}')
            a.append(f'v_add_f32 v{TS + qs}, v{TS + qs}, v{t1}')
        a.append(f'v_cvt_pk_bf16_f32 v{Preg(qs, s) + i}, v{t0}, v{t1}')
        A.append(a)
    ops = []
    n = len(pairs)
    for k in range(n + 2):
        if k < n:
            ops += F[k]
        if 0 <= k - 1 < n:
            ops += E[k - 1]
        if 0 <= k - 2 < n:
            ops += A[k - 2]
    return ops


def check_ops(lbl):
    return [f'v_max_f32 v{vMX}, v{TS}, v{TS + 1}',
            f'v_cmp_nle_f32 vcc, v{vMX}, s{sTHR}' if False else f'v_cmp_nge_f32 vcc, s{sTHR}, v{vMX}',
            f's_cbranch_vccnz {lbl}',
            f'{lbl}_ret:',
            f'v_add_f32 v{L_}, v{L_}, v{TS}',
            f'v_add_f32 v{L_ + 1}, v{L_ + 1}, v{TS + 1}']


def rowmax(p, par, qs, dst, tmp):
    s = Sreg(par, qs)
    p(f'v_max3_f32 v{dst}, v{s}, v{s + 1}, v{s + 2}')
    for i in range(3, 15, 2):
        p(f'v_max3_f32 v{dst}, v{dst}, v{s + i}, v{s + i + 1}')
    p(f'v_max_f32 v{dst}, v{dst}, v{s + 15}')
    p(f'v_mov_b32 v{tmp}, v{dst}')
    p(f'v_permlane32_swap_b32 v{dst}, v{tmp}')
    p(f'v_max_f32 v{dst}, v{dst}, v{tmp}')


def slow_stub(p, lbl, par, s):
    p.begin_side()
    p(f'{lbl}:')
    p(f's_call_b64 {sr(sRET, 2)}, Lslow_{par}_{s}')
    p(f's_branch {lbl}_ret')
    p.end_side()


def slow_path(p, par, s):
    p.begin_side()
    p(f'Lslow_{par}_{s}:')
    p('s_nop 15')
    p('s_nop 3')
    for qs in range(2):
        rowmax(p, par, qs, T_, T_ + 1)
        p(f'v_fma_f32 v{T_}, v{T_}, s{sNC}, v{vX0}')
        p(f'v_min_f32 v{T_}, v{T_}, v{NM + qs}')
        p(f'v_sub_f32 v{T_ + 1}, v{T_}, v{NM + qs}')
        p(f'v_exp_f32 v{T_ + 1}, v{T_ + 1}')
        p(f'v_mov_b32 v{NM + qs}, v{T_}')
        p(f'v_mul_f32 v{L_ + qs}, v{L_ + qs}, v{T_ + 1}')
        if qs == 0:
            for i in range(128):
                p(f'v_mul_f32 v{O0 + i}, v{O0 + i}, v{T_ + 1}')
        else:
            for i in range(0, 128, 4):
                for k in range(4):
                    p(f'v_accvgpr_read_b32 v{T_ + 2 + k}, a{O1 + i + k}')
                for k in range(4):
                    p(f'v_mul_f32 v{T_ + 2 + k}, v{T_ + 2 + k}, v{T_ + 1}')
                for k in range(4):
                    p(f'v_accvgpr_write_b32 a{O1 + i + k}, v{T_ + 2 + k}')
    for o in sm_ops(par, s):
        p(o)
    p('s_nop 3')
    p(f's_setpc_b64 {sr(sRET, 2)}')
    p.end_side()


SLOTSEQ = ([0, 1, 2, 3, 4, 5] + [0, 1, 2, 3, 4] * 2) * 2
assert len(SLOTSEQ) == 32


def kread(par_buf, j, slot):
    return [f'ds_read_b128 {vr(RING + 4 * slot, 4)}, v{vKA} offset:{KB[par_buf] + j * 32}']


def vread(par_buf, f, slot):
    s, db = f >> 3, f & 7
    out = []
    for u in range(2):
        a = vVA0 if (s + u) % 2 == 0 else vVA1
        off = par_buf * BUF + (2 * s + u) * PST + db * 64
        out.append(f'ds_read_b64_tr_b16 {vr(RING + 4 * slot + 2 * u, 2)}, v{a} offset:{off}')
    return out


def kv_dma(srd, so, so2, buf, tag):
    out = []
    for i in range(8):
        m0 = buf + (i >> 2) * 4 * PST + (i & 3) * 16
        out.append((f's_add_u32 m0, s{sWM}, {m0}',
                    f'buffer_load_dwordx4 v{vDMA}, {sr(srd, 4)}, s{so if i < 4 else so2} offen offset:{(i & 3) * 1024} lds @{tag}'))
    return out


def wo_dma(c, buf, tag):
    out = []
    for i in range(8):
        out.append((f's_add_u32 m0, s{sWM8}, {buf + i * 1024}\ns_mov_b32 s{sT0 + (i & 1)}, {c * 128 + i * 7168}',
                    f'buffer_load_dwordx4 v{vWOD}, {sr(sWO, 4)}, s{sT0 + (i & 1)} offen lds @{tag}'))
    return out


LEAD = 4
BARP = 13
SM0A = None


def split_ops(ops, frac):
    costs = [Ins(o).cost for o in ops]
    tot = sum(costs)
    acc = 0
    for i, c in enumerate(costs):
        if acc + c / 2 > tot * frac:
            return ops[:i], ops[i:]
        acc += c
    return ops, []


EXP = set()


def _keep(t):
    if 'nosm' in EXP and t.startswith(('v_fma', 'v_exp', 'v_add_f32', 'v_cvt', 'v_max_f32')):
        return False
    if 'nolds' in EXP and t.startswith('ds_read'):
        return False
    if 'nodma' in EXP and t.startswith('buffer_load'):
        return False
    return True


def _m16(m, i):
    import re
    ops = [x.strip() for x in m.split(None, 1)[1].split(',')]
    f, b = re.match(r'([va])\[(\d+):', ops[0]).groups()
    b = int(b)
    out = []
    for k in range(2):
        o = b + 4 * (2 * ((i >> 1) & 1) + k)
        d = f'{f}[{o}:{o + 3}]'
        out.append(f'v_mfma_f32_16x16x32_bf16 {d}, {ops[1]}, {ops[2]}, ' + ('0' if (ops[3] == '0' or (i < 4 and b >= 128 and f == 'v')) else d))
    return out


def emit_phase(p, mf, gaps, pre):
    for i, m in enumerate(mf):
        for t in pre.get(i, []):
            p(t)
        g = [t for t in gaps[i] if _keep(t)]
        if 'm16' in EXP:
            m0, m1 = _m16(m, i)
            h = (len(g) + 1) // 2
            p(m0)
            for t in g[:h]:
                p(t)
            p(m1)
            for t in g[h:]:
                p(t)
            continue
        if 'nomfma' not in EXP:
            p(m)
        for t in g:
            p(t)


def place_dma(gaps, dmas, g0, g1):
    n = len(dmas)
    for i, (m0, d) in enumerate(dmas):
        g = g0 + (i * (g1 - g0)) // n
        gaps[g].append(m0)
        gaps[g + 1].insert(0, d)


def emit_iter(p, par, uid, first=False, qk=True, dmaA=None, dmaB=None, next_qk=True, last=False,
              sm_next=True):
    sm0 = sm_ops(par, 0)
    _, sm0b = split_ops(sm0, 0.5)
    sm1 = sm_ops(par, 1)
    sm1a, sm1b = split_ops(sm1, 0.5)
    sm0n = sm_ops(1 - par, 0)
    sm0a, _ = split_ops(sm0n, 0.5)
    l0, l1 = f'Lslow0_{uid}', f'Lslow1_{uid}'
    slow_stub(p, l0, par, 0)
    slow_stub(p, l1, par, 1)
    npre = 16 - BARP
    if qk:
        mf, gaps, pre = [], [[] for _ in range(32)], {}
        for j in range(16):
            sl = SLOTSEQ[j]
            for qs in range(2):
                d = vr(Sreg(1 - par, qs), 16)
                c = '0' if j == 0 else d
                mf.append(f'v_mfma_f32_32x32x16_bf16 {d}, {vr(RING + 4 * sl, 4)}, {Qreg(qs, j)}, {c}')
        for j in range(npre, 16):
            g = max(0, 2 * (j - LEAD - 1) + 1) if j - LEAD - 1 >= 0 else j - npre
            gaps[g] += kread(1 - par, j, SLOTSEQ[j])
        pre[2 * BARP] = [f'WAITVM VB{par} lgkm0', 's_barrier']
        for f in range(npre):
            gaps[2 * (BARP + f)] += vread(par, f, SLOTSEQ[16 + f])
        spread(gaps, sm0b, 0, 14)
        gaps[14] += check_ops(l0)[:2]
        gaps[15] += check_ops(l0)[2:]
        spread(gaps, sm1a, 16, 32)
        if dmaA:
            place_dma(gaps, dmaA, 1, 2 * BARP - 3)
        emit_phase(p, mf, gaps, pre)
    else:
        p(f'WAITVM VB{par} lgkm0')
        p('s_barrier')
        for f in range(npre):
            for t in vread(par, f, SLOTSEQ[16 + f]):
                p(t)
        if dmaA:
            for m0, d in dmaA:
                p(m0)
                p('s_nop 0')
                p(d)
        for o in sm0b + check_ops(l0) + sm1a:
            p(o)
    mf, gaps, pre = [], [[] for _ in range(32)], {}
    for f in range(16):
        s, db = f >> 3, f & 7
        sl = SLOTSEQ[16 + f]
        for qs in range(2):
            d = Oreg(qs, db)
            c = '0' if (first and s == 0) else d
            mf.append(f'v_mfma_f32_32x32x16_bf16 {d}, {vr(RING + 4 * sl, 4)}, {vr(Preg(qs, s), 4)}, {c}')
    for f in range(npre, 16):
        g = max(0, 2 * (f - LEAD - 1) + 1) if f - LEAD - 1 >= 0 else f - npre
        gaps[g] += vread(par, f, SLOTSEQ[16 + f])
    spread(gaps, sm1b, 0, 14)
    gaps[14] += check_ops(l1)[:2]
    gaps[15] += check_ops(l1)[2:]
    if last:
        gaps[16] += [f'v_mov_b32 v{T_}, v{L_}', f'v_mov_b32 v{T_ + 1}, v{L_ + 1}']
        gaps[17] += [f'v_permlane32_swap_b32 v{L_}, v{T_}', f'v_permlane32_swap_b32 v{L_ + 1}, v{T_ + 1}']
        gaps[18] += [f'v_add_f32 v{L_}, v{L_}, v{T_}', f'v_add_f32 v{L_ + 1}, v{L_ + 1}, v{T_ + 1}']
        gaps[19] += [f'v_lshrrev_b32 v{T_}, 2, v{vL16}', f'v_add_u32 v{T_}, s{sT2}, v{T_}']
        gaps[20] += [f'ds_write_b32 v{T_}, v{NM + 1}', f'ds_write_b32 v{T_}, v{L_ + 1} offset:256']
        pre[2 * BARP] = ['s_waitcnt lgkmcnt(0)', 's_barrier']
        gaps[2 * BARP] += [f'v_xor_b32 v{T_}, 512, v{T_}']
        gaps[2 * BARP + 1] += [f'ds_read_b32 v{T_ + 2}, v{T_}', f'ds_read_b32 v{T_ + 3}, v{T_} offset:256']
    else:
        if next_qk:
            pre[2 * BARP] = [f'WAITVM KB{par} lgkm0', 's_barrier']
            for j in range(npre):
                gaps[2 * (BARP + j)] += kread(par, j, SLOTSEQ[j])
        else:
            pre[2 * BARP] = ['s_waitcnt lgkmcnt(0)', 's_barrier']
        spread(gaps, sm0a, 16, 32)
    if dmaB:
        place_dma(gaps, dmaB, 1, 2 * BARP - 3)
    emit_phase(p, mf, gaps, pre)


STAMPS = []


def stamp(p, name, on):
    if not on:
        return
    i = len(STAMPS)
    STAMPS.append(name)
    p(f's_memtime {sr(60 + 2 * i, 2)}')
    p(f's_memrealtime {sr(80 + 2 * i, 2)}')


def stamp_flush(p, on):
    if not on:
        return
    n = len(STAMPS)
    p('s_waitcnt lgkmcnt(0)')
    p(f's_lshl_b32 s{sT0}, s2, 2\ns_add_u32 s{sT0}, s{sT0}, s{sW}\ns_lshl_b32 s{sT0}, s{sT0}, 7\ns_add_u32 s{sT0}, s{sT0}, {WS_STAT}')
    p(f's_add_u32 s{sH}, s36, s{sT0}\ns_addc_u32 s{sH + 1}, s37, 0\ns_mov_b32 s{sH + 2}, 128')
    p('v_mov_b32 v1, 0')
    for i in range(n):
        p(f'v_mov_b32 v0, s{60 + 2 * i}')
        p(f'buffer_store_dword v0, v1, {sr(sH, 4)}, 0 offen offset:{4 * i}')
        p(f'v_mov_b32 v0, s{80 + 2 * i}')
        p(f'buffer_store_dword v0, v1, {sr(sH, 4)}, 0 offen offset:{64 + 4 * i}')


def build(dbg=None):
    st = dbg == 'T'
    del STAMPS[:]
    p = Prog('att_kernel')
    for par in range(2):
        for s in range(2):
            slow_path(p, par, s)
    p(f"""
    s_cmp_ge_u32 s2, 256
    s_cbranch_scc1 Latt_done
    """)
    stamp(p, 'start', st)
    p(f"""
    s_load_dwordx4 s[4:7], s[0:1], 8
    s_load_dwordx4 s[32:35], s[0:1], 24
    s_load_dwordx2 s[36:37], s[0:1], 112
    v_lshrrev_b32 v1, 6, v0
    v_and_b32 v2, 63, v0
    v_readfirstlane_b32 s{sW}, v1
    s_and_b32 s{sT0}, s2, 7
    s_lshr_b32 s{sT1}, s2, 3             ; idx
    s_lshr_b32 s{sT2}, s{sT1}, 4
    s_lshl_b32 s{sT3}, s{sT0}, 1
    s_add_u32 s{sT2}, s{sT2}, s{sT3}     ; head
    s_and_b32 s{sT1}, s{sT1}, 15         ; q block
    s_lshl_b32 s{sT1}, s{sT1}, 2
    s_add_u32 s{sT1}, s{sT1}, s{sW}
    s_lshl_b32 s{sT0}, s{sT0}, 20
    s_waitcnt lgkmcnt(0)
    s_add_u32 s{sKSRD}, s4, s{sT0}
    s_addc_u32 s{sKSRD + 1}, s5, 0
    s_mov_b32 s{sKSRD + 2}, 0x100000
    s_mov_b32 s{sKSRD + 3}, 0x20000
    s_add_u32 s{sVSRD}, s6, s{sT0}
    s_addc_u32 s{sVSRD + 1}, s7, 0
    s_mov_b32 s{sVSRD + 2}, 0x100000
    s_mov_b32 s{sVSRD + 3}, 0x20000
    s_lshl_b32 s{sT0}, s{sT2}, 9
    s_add_u32 s{sWQ}, s32, s{sT0}
    s_addc_u32 s{sWQ + 1}, s33, 0
    s_sub_u32 s{sWQ + 2}, {448 * 8192}, s{sT0}
    s_mov_b32 s{sWQ + 3}, 0x20000
    s_mul_i32 s{sT0}, s{sT2}, {256 * 896}
    s_add_u32 s{sWO}, s34, s{sT0}
    s_addc_u32 s{sWO + 1}, s35, 0
    s_mov_b32 s{sWO + 2}, {256 * 896}
    s_mov_b32 s{sWO + 3}, 0x20000
    s_mul_i32 s{sT0}, s{sT1}, 28672
    s_add_u32 s{sT0}, s{sT0}, {WS_H}
    s_add_u32 s{sH}, s36, s{sT0}
    s_addc_u32 s{sH + 1}, s37, 0
    s_mov_b32 s{sH + 2}, 28672
    s_mov_b32 s{sH + 3}, 0x20000
    s_lshl_b32 s{sT0}, s{sT2}, 6
    s_add_u32 s{sT0}, s{sT0}, s{sT1}
    s_mul_i32 s{sT0}, s{sT0}, 28672
    s_add_u32 s{sT0}, s{sT0}, {WS_PART}
    s_add_u32 s{sPART}, s36, s{sT0}
    s_addc_u32 s{sPART + 1}, s37, 0
    s_mov_b32 s{sPART + 2}, 28672
    s_mov_b32 s{sPART + 3}, 0x20000
    s_mul_i32 s{sWM}, s{sW}, {8 * PST}
    s_mul_i32 s{sWM4}, s{sW}, {4 * PST}
    s_lshl_b32 s{sWM8}, s{sW}, 13
    s_mov_b32 s{sC}, {f2u(CSCALE)}
    s_mov_b32 s{sNC}, {f2u(-CSCALE)}
    s_mov_b32 s{sTHR}, {f2u(THR)}
    """)
    p(f"""
    v_lshlrev_b32 v{vL16}, 4, v2
    v_lshrrev_b32 v3, 5, v2
    v_and_b32 v4, 31, v2
    v_bfe_u32 v5, v2, 2, 2
    v_and_b32 v6, 3, v2
    v_bfe_u32 v7, v2, 4, 1
    v_lshl_add_u32 v8, v3, 2, v1
    v_lshlrev_b32 v8, 13, v8
    v_lshl_add_u32 v10, v4, 4, v8
    """)
    WQSLOT = [VB[0], VB[0] + 16 * PST, KB[1], KB[1] + 16 * PST, VB[1], VB[1] + 16 * PST]

    def wq_dma(hc):
        out = []
        for i in range(4):
            out.append((f's_add_u32 m0, s{sWM4}, {WQSLOT[hc % 6] + i * PST}\ns_mov_b32 s{sT0 + (i & 1)}, {(hc * 32 + 8 * i) * 8192}',
                        f'buffer_load_dwordx4 v10, {sr(sWQ, 4)}, s{sT0 + (i & 1)} offen lds @wq{hc}'))
        return out

    def hload(J):
        return f'buffer_load_dwordx4 {ar(4 * J, 4)}, v{vL16}, {sr(sH, 4)}, s{sT2 + ((J >> 2) & 1)} offen offset:{(J & 3) * 1024}'

    for hc in range(6):
        for m0, d in wq_dma(hc):
            p(m0)
            p(d)
        for J in (2 * hc, 2 * hc + 1):
            if J % 4 == 0:
                p(f's_mov_b32 s{sT2 + ((J >> 2) & 1)}, {(J >> 2) * 4096}')
            p(hload(J))
    for J in range(12, 28):
        if J % 4 == 0:
            p(f's_mov_b32 s{sT2 + ((J >> 2) & 1)}, {(J >> 2) * 4096}')
        p(hload(J))
    p(f"""
    v_lshlrev_b32 v8, 13, v1
    v_add_u32 v{vDMA}, v8, v{vL16}
    s_mov_b32 s{sKO}, 0
    s_mov_b32 s{sKO2}, 4096
    """)
    for m0, d in kv_dma(sKSRD, sKO, sKO2, KB[0], 'KB0'):
        p(m0)
        p('s_nop 0')
        p(d)
    p(f"""
    s_mov_b32 s{sT0}, {PST}
    v_and_b32 v9, 1, v1
    v_lshlrev_b32 v9, 4, v9
    v_lshrrev_b32 v11, 3, v4
    v_add_u32 v11, v11, v9
    v_lshl_add_u32 v11, v6, 2, v11
    v_mul_lo_u32 v11, v11, s{sT0}
    v_lshrrev_b32 v12, 2, v4
    v_lshrrev_b32 v13, 3, v4
    v_xor_b32 v12, v12, v13
    v_lshrrev_b32 v13, 4, v4
    v_xor_b32 v12, v12, v13
    v_and_b32 v12, 1, v12
    v_lshl_add_u32 v11, v12, 9, v11
    v_lshl_add_u32 v{vKA}, v3, 4, v11
    v_lshl_add_u32 v11, v5, 2, v9
    v_mul_lo_u32 v11, v11, s{sT0}
    v_lshl_add_u32 v11, v7, 5, v11
    v_lshl_add_u32 v11, v6, 3, v11
    v_add_u32 v11, {VB[0]}, v11
    v_lshl_add_u32 v{vVA0}, v3, 9, v11
    v_xor_b32 v12, 1, v3
    v_lshl_add_u32 v{vVA1}, v12, 9, v11
    v_and_b32 v12, 1, v6
    v_lshlrev_b32 v14, 5, v7
    v_lshl_add_u32 v14, v12, 4, v14
    v_lshrrev_b32 v12, 1, v6
    v_lshl_add_u32 v14, v12, 3, v14
    v_lshl_add_u32 v11, v5, 2, v3
    v_mul_lo_u32 v11, v11, s{sT0}
    v_add_u32 v11, v11, v14
    v_add_u32 v{vX0}, {KB[1]}, v11
    v_add_u32 v{vX1}, {VB[1]}, v11
    v_lshl_add_u32 v11, v3, 2, v5
    v_lshl_add_u32 v{vWOA}, v11, 6, v14
    v_bfe_u32 v11, v2, 2, 3
    v_lshl_add_u32 v11, v1, 6, v11
    s_movk_i32 s{sT0}, 896
    v_mul_lo_u32 v11, v11, s{sT0}
    v_lshl_add_u32 v11, v3, 6, v11
    v_lshl_add_u32 v{vWOD}, v6, 4, v11
    v_mov_b32 v{T_}, v10
    """)
    VQD = T_

    def wq_read(f):
        hc, r = f >> 4, f & 15
        s, db = r >> 3, r & 7
        slot = WQSLOT[hc % 6]
        base, areg = (KB[1], vX0) if slot < VB[1] else (VB[1], vX1)
        out = []
        for u in range(2):
            off = slot - base + 2 * s * PST + u * 512 + db * 64
            out.append(f'ds_read_b64_tr_b16 {vr(S_ + 4 * (f % 16) + 2 * u, 2)}, v{areg} offset:{off}')
        return out

    QL = 8
    p('WAITVM wq0')
    p('s_barrier')
    stamp(p, 'wq0', st)
    for f in range(QL):
        for t in wq_read(f):
            p(t)
    pend = []
    for f in range(224):
        hc, r = f >> 4, f & 15
        s, db = r >> 3, r & 7
        J = 2 * hc + s
        d = vr(16 * db, 16)
        c = '0' if J == 0 else d
        p(f'v_mfma_f32_32x32x16_bf16 {d}, {vr(S_ + 4 * (f % 16), 4)}, {ar(4 * J, 4)}, {c}')
        if pend:
            p(pend.pop(0))
        fn = f + QL
        if fn < 224:
            if fn % 16 == 0:
                hn = fn >> 4
                p(f'WAITVM wq{hn}')
                p('s_barrier')
                if hn >= 2 and hn + 4 < 14:
                    for m0, d2 in wq_dma(hn + 4):
                        pend += [m0, d2.replace('v10,', f'v{VQD},')]
                if hn == 11:
                    pend += [f's_mov_b32 s{sKO}, 32768\ns_mov_b32 s{sKO2}, {32768 + 4096}']
                    for m0, d2 in kv_dma(sKSRD, sKO, sKO2, KB[1], 'KB1'):
                        pend += [m0, d2]
            for t in wq_read(fn):
                p(t)
    assert not pend
    stamp(p, 'qproj', st)
    for i in range(64):
        p(f'v_cvt_pk_bf16_f32 v{S_ + i}, v{2 * i}, v{2 * i + 1}')
    p(f"""
    s_lshl_b32 s{sT0}, s{sW}, 14
    s_add_u32 s{sT0}, s{sT0}, {VB[0]}
    v_add_u32 v{T_}, s{sT0}, v{vL16}
    s_xor_b32 s{sT1}, s{sW}, 1
    s_lshl_b32 s{sT1}, s{sT1}, 14
    s_add_u32 s{sT1}, s{sT1}, {VB[0]}
    v_add_u32 v{T_ + 1}, s{sT1}, v{vL16}
    s_barrier
    """)
    for j in range(16):
        p(f'ds_write_b128 v{T_}, {vr(S_ + 4 * j, 4)} offset:{j * 1024}')
    p('WAITVM KB0 lgkm0')
    p('s_barrier')
    for j in range(16):
        p(f'ds_read_b128 {Qreg(0, j)}, v{T_} offset:{j * 1024}')
        p(f'ds_read_b128 {Qreg(1, j)}, v{T_ + 1} offset:{j * 1024}')
    for j in range(3):
        p(kread(0, j, SLOTSEQ[j])[0])
    p(f"""
    v_mov_b32 v{vX0}, {f2u(-DELTA)}
    v_mov_b32 v{L_}, 0
    v_mov_b32 v{L_ + 1}, 0
    s_mov_b32 s{sVO}, 0
    s_mov_b32 s{sVO2}, 4096
    s_waitcnt lgkmcnt(0)
    s_barrier
    """)
    mf, gaps, pre = [], [[] for _ in range(32)], {}
    for j in range(16):
        sl = SLOTSEQ[j]
        for qs in range(2):
            d = vr(Sreg(0, qs), 16)
            c = '0' if j == 0 else d
            mf.append(f'v_mfma_f32_32x32x16_bf16 {d}, {vr(RING + 4 * sl, 4)}, {Qreg(qs, j)}, {c}')
    for j in range(3, 16):
        g = max(0, 2 * (j - LEAD - 1) + 1) if j - LEAD - 1 >= 0 else j - 3
        gaps[g] += kread(0, j, SLOTSEQ[j])
    place_dma(gaps, kv_dma(sVSRD, sVO, sVO2, VB[0], 'VB0'), 0, 20)
    emit_phase(p, mf, gaps, pre)
    p('WAITVM KB1 lgkm0')
    p('s_barrier')
    p(f's_mov_b32 s{sKO}, {2 * 32768}\ns_mov_b32 s{sKO2}, {2 * 32768 + 4096}')
    for m0, d in kv_dma(sKSRD, sKO, sKO2, KB[0], 'KB0'):
        p(m0)
        p('s_nop 0')
        p(d)
    for j in range(3):
        p(kread(1, j, SLOTSEQ[j])[0])
    for qs in range(2):
        rowmax(p, 0, qs, T_ + 2 * qs, T_ + 2 * qs + 1)
        p(f'v_fma_f32 v{NM + qs}, v{T_ + 2 * qs}, s{sNC}, v{vX0}')
    sm0a, _ = split_ops(sm_ops(0, 0), 0.5)
    for o in sm0a:
        p(o)

    def adv(*regs):
        return '\n'.join(f's_add_u32 s{r}, s{r}, 32768' for r in regs)

    def std_iter(par, uid, **kw):
        dA = kv_dma(sVSRD, sVO, sVO2, VB[1 - par], f'VB{1 - par}')
        dB = kv_dma(sKSRD, sKO, sKO2, KB[1 - par], f'KB{1 - par}')
        dA[0] = (adv(sVO, sVO2) + '\n' + dA[0][0], dA[0][1])
        dB[0] = (adv(sKO, sKO2) + '\n' + dB[0][0], dB[0][1])
        args = dict(dmaA=dA, dmaB=dB)
        args.update(kw)
        emit_iter(p, par, uid, **args)

    stamp(p, 'preloop', st)
    std_iter(0, 'i0', first=True)
    std_iter(1, 'i1')
    stamp(p, 'loop0', st)
    p(f's_mov_b32 s{sCNT}, 13')
    p.begin_loop()
    p('.p2align 6')
    p('Latt_loop:')
    std_iter(0, 'l0')
    std_iter(1, 'l1')
    p(f's_sub_u32 s{sCNT}, s{sCNT}, 1')
    p(f's_cmp_lg_u32 s{sCNT}, 0')
    p('s_cbranch_scc1 Latt_loop')
    p.end_loop()
    stamp(p, 'loop1', st)
    std_iter(0, 'i28')
    std_iter(1, 'i29', dmaB=wo_dma(0, 0, 'wo0'))
    std_iter(0, 'i30', dmaB=None, next_qk=False)
    p(f's_lshl_b32 s{sT2}, s{sW}, 9\ns_add_u32 s{sT2}, s{sT2}, {XR}')
    std_iter(1, 'i31', qk=False, dmaA=None, dmaB=None, last=True)

    stamp(p, 'mainend', st)
    p(f"""
    s_lshl_b32 s{sT0}, s{sW}, 15
    s_add_u32 s{sT0}, s{sT0}, 32768
    v_add_u32 v{T_}, s{sT0}, v{vL16}
    s_xor_b32 s{sT1}, s{sW}, 1
    s_lshl_b32 s{sT1}, s{sT1}, 15
    s_add_u32 s{sT1}, s{sT1}, 32768
    v_add_u32 v{T_ + 1}, s{sT1}, v{vL16}
    s_waitcnt lgkmcnt(0)
    s_barrier
    """)
    for i in range(32):
        p(f'ds_write_b128 v{T_}, {ar(O1 + 4 * i, 4)} offset:{i * 1024}')
    p(f"""
    v_min_f32 v{T_ + 4}, v{NM}, v{T_ + 2}
    v_sub_f32 v{T_ + 5}, v{T_ + 4}, v{NM}
    v_sub_f32 v{T_ + 6}, v{T_ + 4}, v{T_ + 2}
    v_exp_f32 v{T_ + 5}, v{T_ + 5}
    v_exp_f32 v{T_ + 6}, v{T_ + 6}
    s_nop 0
    v_mul_f32 v{T_ + 4}, v{T_ + 5}, v{L_}
    v_fmac_f32 v{T_ + 4}, v{T_ + 6}, v{T_ + 3}
    v_rcp_f32 v{T_ + 4}, v{T_ + 4}
    s_nop 0
    v_mul_f32 v{T_ + 5}, v{T_ + 5}, v{T_ + 4}
    v_mul_f32 v{T_ + 6}, v{T_ + 6}, v{T_ + 4}
    s_waitcnt lgkmcnt(0)
    s_barrier
    """)
    FO, FR = T_ + 5, T_ + 6
    for i in range(16):
        p(f'ds_read_b128 {vr(S_ + 4 * i, 4)}, v{T_ + 1} offset:{i * 1024}')
    for i in range(16, 32):
        p(f'ds_read_b128 {ar(Q_ + 4 * (i - 16), 4)}, v{T_ + 1} offset:{i * 1024}')
    p('s_waitcnt lgkmcnt(0)')
    p('s_barrier')
    pend = []
    for c in range(1, 5):
        for m0, d in wo_dma(c, 32768 * c, f'wo{c}'):
            pend += [m0, d]
    for i in range(0, 128, 2):
        if i < 64:
            r0, r1 = S_ + i, S_ + i + 1
        else:
            r0, r1 = RING + (i % 8), RING + (i % 8) + 1
            p(f'v_accvgpr_read_b32 v{r0}, a{Q_ + i - 64}')
            p(f'v_accvgpr_read_b32 v{r1}, a{Q_ + i - 63}')
        p(f'v_mul_f32 v{O0 + i}, v{O0 + i}, v{FO}')
        p(f'v_mul_f32 v{O0 + i + 1}, v{O0 + i + 1}, v{FO}')
        if pend:
            p(pend.pop(0))
        p(f'v_fmac_f32 v{O0 + i}, v{r0}, v{FR}')
        p(f'v_fmac_f32 v{O0 + i + 1}, v{r1}, v{FR}')
        p(f'v_cvt_pk_bf16_f32 v{O0 + i // 2}, v{O0 + i}, v{O0 + i + 1}')
    assert not pend
    if dbg == 'O':
        for J in range(16):
            p(f's_mov_b32 s{sT0}, {(J >> 2) * 4096}')
            p(f'buffer_store_dwordx4 {vr(4 * J, 4)}, v{vL16}, {sr(sPART, 4)}, s{sT0} offen offset:{(J & 3) * 1024}')
        p('s_waitcnt vmcnt(0)')
        p('Latt_done:')
        p('s_endpgm')
        return p

    ACC = 64
    WSLOT = [0, 1, 2, 3, 4, 0, 1]

    def wo_read(f):
        c, r = f >> 5, f & 31
        J, nb = r >> 1, r & 1
        out = []
        for u in range(2):
            off = (2 * J + u) * 1024 + nb * 512
            out.append(f'ds_read_b64_tr_b16 {vr(S_ + 4 * (f % 16) + 2 * u, 2)}, v{vX0 + (c & 1)} offset:{off}')
        return out

    def setbase(c):
        return f'v_add_u32 v{vX0 + (c & 1)}, {WSLOT[c] * 32768}, v{vWOA}' if WSLOT[c] else f'v_mov_b32 v{vX0 + (c & 1)}, v{vWOA}'

    def out_ops(c):
        ops = [f's_mov_b32 s{sT2}, {c * 4096}']
        for nb in range(2):
            a = ACC + (c & 1) * 32 + nb * 16
            for hh in range(2):
                dst = P_ + (nb * 2 + hh) * 4
                for i in range(4):
                    ops.append(f'v_cvt_pk_bf16_f32 v{dst + i}, v{a + 8 * hh + 2 * i}, v{a + 8 * hh + 2 * i + 1}')
                ops.append(f'buffer_store_dwordx4 {vr(dst, 4)}, v{vL16}, {sr(sPART, 4)}, s{sT2} offen offset:{(nb * 2 + hh) * 1024}')
        return ops

    stamp(p, 'merged', st)
    OL = 8
    p(setbase(0))
    p('WAITVM wo0')
    p('s_barrier')
    for f in range(OL):
        for t in wo_read(f):
            p(t)
    pend = []
    late = []
    for f in range(224):
        c, r = f >> 5, f & 31
        J, nb = r >> 1, r & 1
        d = vr(ACC + (c & 1) * 32 + nb * 16, 16)
        cc = '0' if J == 0 else d
        p(f'v_mfma_f32_32x32x16_bf16 {d}, {vr(S_ + 4 * (f % 16), 4)}, {vr(4 * J, 4)}, {cc}')
        if r == 6 and c > 0:
            late += out_ops(c - 1)
        if pend:
            p(pend.pop(0))
        if late:
            p(late.pop(0))
        fn = f + OL
        if fn < 224:
            if fn % 32 == 0:
                cn = fn >> 5
                p(setbase(cn))
                p(f'WAITVM wo{cn}')
                p('s_barrier')
                if cn in (2, 3):
                    for m0, d2 in wo_dma(cn + 3, WSLOT[cn + 3] * 32768, f'wo{cn + 3}'):
                        pend += [m0, d2]
            for t in wo_read(fn):
                p(t)
    assert not pend and not late
    for o in out_ops(6):
        p(o)
    stamp(p, 'outproj', st)
    if st:
        p('s_waitcnt vmcnt(0)')
    stamp(p, 'end', st)
    stamp_flush(p, st)
    p('Latt_done:')
    p('s_endpgm')
    return p
```

```python
from asmgen import Prog, vr, ar, sr
from layout import *
from k_small import srd, f2u, unpack8

M32 = 'v_mfma_f32_32x32x16_bf16'


def lane_fields(p):
    p("""
    v_lshrrev_b32 v1, 6, v0
    v_and_b32 v2, 63, v0
    v_readfirstlane_b32 s3, v1
    v_lshlrev_b32 v15, 4, v2
    v_lshrrev_b32 v3, 5, v2
    v_bfe_u32 v5, v2, 2, 2
    v_and_b32 v6, 3, v2
    v_bfe_u32 v7, v2, 4, 1
    v_and_b32 v12, 1, v6
    v_lshlrev_b32 v14, 5, v7
    v_lshl_add_u32 v14, v12, 4, v14
    v_lshrrev_b32 v12, 1, v6
    v_lshl_add_u32 v14, v12, 3, v14
    """)


LDS_D = 112 * 1024


def build_d():
    p = Prog('gd_kernel')
    p("""
    s_cmp_ge_u32 s2, 224
    s_cbranch_scc1 Lgd_done
    s_load_dwordx2 s[4:5], s[0:1], 48
    s_load_dwordx2 s[6:7], s[0:1], 112
    """)
    lane_fields(p)
    p(f"""
    s_and_b32 s20, s2, 15
    s_lshr_b32 s21, s2, 4
    s_and_b32 s22, s3, 3
    s_lshl_b32 s23, s20, 2
    s_add_u32 s23, s23, s22
    s_lshr_b32 s24, s3, 2                ; nh
    s_mul_i32 s25, s23, 28672
    s_add_u32 s25, s25, {WS_H2}
    v_lshl_add_u32 v8, v1, 2, v5
    s_movk_i32 s26, 3584
    v_mul_lo_u32 v8, v8, s26
    v_lshrrev_b32 v9, 4, v2
    v_lshl_add_u32 v8, v9, 6, v8
    v_lshl_add_u32 v8, v6, 4, v8
    s_lshl_b32 s27, s21, 8
    s_lshl_b32 s28, s3, 10
    v_lshlrev_b32 v10, 11, v3
    v_lshl_add_u32 v10, v5, 6, v10
    v_add_u32 v10, v10, v14
    s_lshl_b32 s29, s24, 9
    v_add_u32 v10, s29, v10
    v_add_u32 v11, 0x10000, v10
    s_waitcnt lgkmcnt(0)
    """)
    srd(p, 8, 4, 5, 0, 448 * 3584)
    srd(p, 12, 6, 7, 's25', 28672)
    H = 32
    for i in range(14):
        p(f's_add_u32 m0, s28, {i * 8192}')
        p(f's_add_u32 s30, s27, {i * 32 * 3584}')
        p(f'buffer_load_dwordx4 v8, s[8:11], s30 offen lds @w{i >> 1}')
        for J in (2 * i, 2 * i + 1):
            if J % 4 == 0:
                p(f's_movk_i32 s31, {(J >> 2) * 4096}')
            p(f'buffer_load_dwordx4 {vr(H + 4 * J, 4)}, v15, s[12:15], s31 offen offset:{(J & 3) * 1024}')
    p(f"""
    s_mov_b32 s30, {WS_Z1}
    s_cmp_ge_u32 s21, 7
    s_cselect_b32 s30, {WS_Z2}, s30
    s_cselect_b32 s31, 7, 0
    s_sub_u32 s31, s21, s31
    s_lshl_b32 s31, s31, 13
    s_add_u32 s30, s30, s31
    s_mul_i32 s31, s23, 57344
    s_add_u32 s30, s30, s31
    s_lshl_b32 s31, s24, 12
    s_add_u32 s30, s30, s31
    """)
    srd(p, 16, 6, 7, 's30', 4096)
    ACC = 144
    RG = 176
    NR = 8

    def rd(f):
        J, nb = f >> 1, f & 1
        out = []
        for u in range(2):
            off = J * 4096 + u * 1024 + nb * 256
            a = 10
            if off >= 65536:
                off -= 65536
                a = 11
            out.append(f'ds_read_b64_tr_b16 {vr(RG + 4 * (f % NR) + 2 * u, 2)}, v{a} offset:{off}')
        return out

    LD = 6
    p('WAITVM w0')
    p('s_barrier')
    for f in range(LD):
        for t in rd(f):
            p(t)
    for f in range(56):
        J, nb = f >> 1, f & 1
        d = vr(ACC + 16 * nb, 16)
        p(f'{M32} {d}, {vr(RG + 4 * (f % NR), 4)}, {vr(H + 4 * J, 4)}, ' + ('0' if J == 0 else d))
        fn = f + LD
        if fn < 56:
            if fn % 8 == 0:
                p(f'WAITVM w{fn >> 3}')
                p('s_barrier')
            for t in rd(fn):
                p(t)
    k0 = 0.7978845608028654
    c0 = -2.0 * 1.4426950408889634 * k0
    c1 = c0 * 0.044715
    p(f's_mov_b32 s32, {f2u(c1)}\nv_mov_b32 v16, {f2u(c0)}')
    T = 32
    for blk in range(4):
        a = ACC + 8 * blk
        t = T + 8 * (blk & 1)
        for e in range(8):
            p(f'v_mul_f32 v{t + e}, v{a + e}, v{a + e}')
        for e in range(8):
            p(f'v_fma_f32 v{t + e}, v{t + e}, s32, v16')
        for e in range(8):
            p(f'v_mul_f32 v{t + e}, v{t + e}, v{a + e}')
        for e in range(8):
            p(f'v_exp_f32 v{t + e}, v{t + e}')
        for e in range(8):
            p(f'v_add_f32 v{t + e}, 1.0, v{t + e}')
        for e in range(8):
            p(f'v_rcp_f32 v{t + e}, v{t + e}')
        for e in range(8):
            p(f'v_mul_f32 v{t + e}, v{t + e}, v{a + e}')
        o = 48 + 4 * blk
        for i in range(4):
            p(f'v_cvt_pk_bf16_f32 v{o + i}, v{t + 2 * i}, v{t + 2 * i + 1}')
        p(f'buffer_store_dwordx4 {vr(o, 4)}, v15, s[16:19], 0 offen offset:{blk * 1024}')
    p('Lgd_done:')
    p('s_endpgm')
    return p


E_STAGE = 49152
LDS_E = 3 * E_STAGE


def build_e():
    p = Prog('ge_kernel')
    p("""
    s_cmp_ge_u32 s2, 224
    s_cbranch_scc1 Lge_done
    s_load_dwordx4 s[4:7], s[0:1], 56
    s_load_dwordx2 s[36:37], s[0:1], 112
    """)
    lane_fields(p)
    p(f"""
    s_and_b32 s20, s2, 7
    s_lshl_b32 s20, s20, 2
    s_lshr_b32 s21, s2, 3
    s_and_b32 s22, s21, 3
    s_add_u32 s20, s20, s22
    s_lshr_b32 s21, s2, 5                ; fblk (128 f)
    s_lshl_b32 s22, s21, 2
    s_add_u32 s22, s22, s3
    s_lshl_b32 s22, s22, 17
    s_add_u32 s22, s22, {WS_Z2N}
    s_lshl_b32 s23, s20, 18
    v_lshrrev_b32 v8, 3, v2
    v_lshrrev_b32 v9, 1, v8
    v_and_b32 v10, 7, v2
    v_xor_b32 v9, v9, v10
    v_lshl_add_u32 v8, v1, 4, v8
    v_lshlrev_b32 v8, 12, v8
    v_lshl_add_u32 v16, v9, 4, v8
    v_xor_b32 v9, 4, v9
    v_lshl_add_u32 v17, v9, 4, v8
    v_add_u32 v17, {8 * 4096}, v17
    s_lshl_b32 s24, s3, 13
    s_lshl_b32 s25, s3, 11
    s_add_u32 s25, s25, 32768
    v_lshl_add_u32 v9, v3, 3, v5
    v_lshl_add_u32 v18, v9, 6, v14
    s_lshr_b32 s26, s3, 1
    s_lshl_b32 s26, s26, 14
    v_add_u32 v18, s26, v18
    v_and_b32 v9, 31, v2
    v_bfe_u32 v10, v2, 1, 3
    v_xor_b32 v10, v10, v3
    s_and_b32 s27, s3, 1
    s_lshl_b32 s28, s27, 12
    s_add_u32 s28, s28, 32768
    v_lshlrev_b32 v9, 7, v9
    v_add_u32 v9, s28, v9
    v_lshl_add_u32 v20, v10, 4, v9
    v_xor_b32 v21, 32, v20
    v_xor_b32 v22, 64, v20
    v_xor_b32 v23, 96, v20
    s_waitcnt lgkmcnt(0)
    """)
    srd(p, 8, 36, 37, 's22', 131072)
    srd(p, 12, 4, 5, 's23', 64 * 4096)

    def dma(st):
        b = (st % 3) * E_STAGE
        out = []
        for i in range(8):
            pre = f's_add_u32 m0, s24, {b + (i >> 2) * 4096}\ns_mov_b32 s30, {st * 8192 + (i >> 2) * 4096}' if i % 4 == 0 else None
            out.append((pre, f'buffer_load_dwordx4 v15, s[8:11], s30 offen offset:{(i & 3) * 1024} lds @s{st}'))
        for kh in range(2):
            for rg in range(2):
                pre = f's_add_u32 m0, s25, {b + kh * 8192 + rg * 1024}\ns_movk_i32 s31, {st * 256 + kh * 128}'
                out.append((pre, f'buffer_load_dwordx4 v{16 + rg}, s[12:15], s31 offen lds @s{st}'))
        return out

    def emit_dma(lst):
        for pre, d in lst:
            if pre:
                p(pre)
            p(d)

    emit_dma(dma(0))
    emit_dma(dma(1))
    emit_dma(dma(2))
    p(f"""
    s_lshl_b32 s32, s20, 1
    s_add_u32 s32, s32, s27              ; tb
    s_mul_i32 s33, s32, 57344
    s_lshl_b32 s34, s21, 13
    s_add_u32 s33, s33, s34
    s_lshr_b32 s34, s3, 1
    s_lshl_b32 s34, s34, 12
    s_add_u32 s33, s33, s34
    s_add_u32 s34, s33, {WS_Z1}
    s_add_u32 s35, s33, {WS_U}
    v_and_b32 v9, 31, v2
    v_lshlrev_b32 v9, 1, v9
    s_lshl_b32 s32, s32, 6
    """)
    srd(p, 16, 36, 37, 's34', 4096)
    srd(p, 40, 36, 37, 's35', 4096)
    srd(p, 44, 6, 7, 0, 4096)
    Z = 32
    for i in range(4):
        p(f'buffer_load_dwordx4 {vr(Z + 4 * i, 4)}, v15, s[16:19], 0 offen offset:{i * 1024}')
    p('buffer_load_ushort v24, v9, s[44:47], s32 offen')
    ACC = 64
    RA, RB = 96, 160
    VA = [18, 19, 25]
    p(f'v_add_u32 v19, {E_STAGE}, v18\nv_add_u32 v25, {2 * E_STAGE}, v18')
    VBb = [20, 26, 48]
    for k in range(4):
        p(f'v_add_u32 v{26 + k}, {E_STAGE}, v{20 + k}')
        p(f'v_add_u32 v{48 + k}, {2 * E_STAGE}, v{20 + k}')

    def rd(g):
        st, j = g >> 3, g & 7
        out = [f'ds_read_b128 {vr(RB + 4 * (g % 8), 4)}, v{VBb[st % 3] + (j & 3)} offset:{(j >> 2) * 8192}']
        for fb in range(2):
            for u in range(2):
                off = fb * 8192 + j * 1024 + u * 256
                out.append(f'ds_read_b64_tr_b16 {vr(RA + 4 * ((2 * g + fb) % 16) + 2 * u, 2)}, v{VA[st % 3]} offset:{off}')
        return out

    LD = 3
    p('WAITVM s0')
    p('s_barrier')
    pend = []
    for g in range(LD):
        for t in rd(g):
            p(t)
    for g in range(128):
        gn = g + LD
        r = []
        if gn < 128:
            r = rd(gn)
        for fb in range(2):
            d = vr(ACC + 16 * fb, 16)
            p(f'{M32} {d}, {vr(RA + 4 * ((2 * g + fb) % 16), 4)}, {vr(RB + 4 * (g % 8), 4)}, ' + ('0' if g == 0 else d))
            if fb == 0 and gn < 128 and gn % 8 == 0:
                sn = gn >> 3
                assert not pend
                p(f'WAITVM s{sn} lgkm0')
                p('s_barrier')
                if sn + 2 < 16:
                    pend = dma(sn + 2)
            for t in (r[:3] if fb == 0 else r[3:]):
                p(t)
            if pend:
                emit_dma([pend.pop(0)])
    p('v_lshlrev_b32 v24, 16, v24')
    for blk in range(4):
        a = ACC + 8 * blk
        unpack8(p, Z + 4 * blk, 96)
        for e in range(8):
            p(f'v_add_f32 v{a + e}, v{a + e}, v24')
        for e in range(8):
            p(f'v_mul_f32 v{a + e}, v{a + e}, v{96 + e}')
        o = 104 + 4 * blk
        for i in range(4):
            p(f'v_cvt_pk_bf16_f32 v{o + i}, v{a + 2 * i}, v{a + 2 * i + 1}')
        p(f'buffer_store_dwordx4 {vr(o, 4)}, v15, s[40:43], 0 offen offset:{blk * 1024}')
    p('Lge_done:')
    p('s_endpgm')
    return p


LDS_F = 112 * 1024 + 16384


def build_f():
    p = Prog('gf_kernel')
    p("""
    s_cmp_ge_u32 s2, 224
    s_cbranch_scc1 Lgf_done
    s_load_dwordx2 s[4:5], s[0:1], 72
    s_load_dwordx2 s[6:7], s[0:1], 96
    s_load_dwordx2 s[36:37], s[0:1], 112
    """)
    lane_fields(p)
    p(f"""
    s_and_b32 s20, s2, 31
    s_lshr_b32 s21, s2, 5                ; nblk (64 n)
    s_and_b32 s22, s3, 1
    s_lshr_b32 s23, s3, 1                ; khalf
    s_lshl_b32 s24, s20, 1
    s_add_u32 s24, s24, s22              ; tb
    s_mul_i32 s25, s24, 57344
    s_mul_i32 s26, s23, 28672
    s_add_u32 s25, s25, s26
    s_add_u32 s25, s25, {WS_U}
    s_mul_i32 s26, s23, 56
    s_add_u32 s26, s26, s22
    s_lshl_b32 s27, s26, 10
    s_mul_i32 s28, s26, {8 * 896}
    s_lshl_b32 s29, s21, 7
    s_add_u32 s28, s28, s29
    v_bfe_u32 v8, v2, 2, 3
    s_movk_i32 s29, 896
    v_mul_lo_u32 v8, v8, s29
    v_lshl_add_u32 v8, v3, 6, v8
    v_lshl_add_u32 v8, v6, 4, v8
    v_lshlrev_b32 v10, 10, v3
    v_lshl_add_u32 v10, v5, 6, v10
    v_add_u32 v10, v10, v14
    s_mul_i32 s29, s23, {56 * 1024}
    v_add_u32 v10, s29, v10
    s_waitcnt lgkmcnt(0)
    """)
    srd(p, 8, 4, 5, 0, 896 * 896)
    srd(p, 12, 36, 37, 's25', 28672)
    U = 32
    for i in range(28):
        p(f's_add_u32 m0, s27, {i * 2048}')
        p(f's_add_u32 s30, s28, {i * 16 * 896}')
        p(f'buffer_load_dwordx4 v8, s[8:11], s30 offen lds @w{i >> 2}')
        if i % 4 == 0:
            p(f's_movk_i32 s31, {(i >> 2) * 4096}')
        p(f'buffer_load_dwordx4 {vr(U + 4 * i, 4)}, v15, s[12:15], s31 offen offset:{(i & 3) * 1024}')
    p(f"""
    s_lshl_b32 s32, s21, 1
    s_add_u32 s32, s32, s23
    s_mul_i32 s33, s24, 28672
    s_lshl_b32 s34, s32, 11
    s_add_u32 s33, s33, s34
    s_add_u32 s33, s33, {WS_X1}
    s_lshl_b32 s34, s32, 7
    s_add_u32 s34, s34, {5 * 1792}
    v_lshlrev_b32 v9, 5, v3
    """)
    srd(p, 16, 36, 37, 's33', 2048)
    srd(p, 40, 36, 37, WS_MOD, 2688 * 4)
    srd(p, 44, 6, 7, 0, 2048 * 896)
    X1, GB = 208, 216
    for hh in range(2):
        p(f'buffer_load_dwordx4 {vr(X1 + 4 * hh, 4)}, v15, s[16:19], 0 offen offset:{hh * 1024}')
        for k in range(2):
            p(f'buffer_load_dwordx4 {vr(GB + 8 * hh + 4 * k, 4)}, v9, s[40:43], s34 offen offset:{hh * 64 + 16 * k}')
    ACC = 144
    RG = 176
    NR = 8

    def rd(f):
        J, nb = f >> 1, f & 1
        return [f'ds_read_b64_tr_b16 {vr(RG + 4 * (f % NR) + 2 * u, 2)}, v10 offset:{J * 2048 + nb * 512 + u * 256}' for u in range(2)]

    LD = 6
    p('WAITVM w0')
    p('s_barrier')
    for f in range(LD):
        for t in rd(f):
            p(t)
    for f in range(56):
        J, nb = f >> 1, f & 1
        d = vr(ACC + 16 * nb, 16)
        p(f'{M32} {d}, {vr(RG + 4 * (f % NR), 4)}, {vr(U + 4 * J, 4)}, ' + ('0' if J == 0 else d))
        fn = f + LD
        if fn < 56:
            if fn % 8 == 0:
                p(f'WAITVM w{fn >> 3}')
                p('s_barrier')
            for t in rd(fn):
                p(t)
    p(f"""
    s_lshl_b32 s30, s3, 12
    s_add_u32 s30, s30, {112 * 1024}
    v_add_u32 v11, s30, v15
    s_xor_b32 s31, s3, 2
    s_lshl_b32 s31, s31, 12
    s_add_u32 s31, s31, {112 * 1024}
    v_add_u32 v12, s31, v15
    s_cmp_eq_u32 s23, 0
    s_cselect_b64 vcc, -1, 0
    s_nop 7
    """)
    for i in range(16):
        p(f'v_cndmask_b32 v{32 + i}, v{ACC + 16 + i}, v{ACC + i}, vcc')
        p(f'v_cndmask_b32 v{48 + i}, v{ACC + i}, v{ACC + 16 + i}, vcc')
    for i in range(4):
        p(f'ds_write_b128 v11, {vr(48 + 4 * i, 4)} offset:{i * 1024}')
    p('s_waitcnt lgkmcnt(0)\ns_barrier')
    for i in range(4):
        p(f'ds_read_b128 {vr(64 + 4 * i, 4)}, v12 offset:{i * 1024}')
    p(f"""
    v_and_b32 v9, 31, v2
    s_movk_i32 s29, 896
    v_mul_lo_u32 v9, v9, s29
    v_lshl_add_u32 v9, v3, 4, v9
    s_mul_i32 s30, s24, {32 * 896}
    s_lshl_b32 s31, s32, 6
    s_add_u32 s30, s30, s31
    """)
    for hh in range(2):
        unpack8(p, X1 + 4 * hh, 80)
        for e in range(8):
            p(f'v_add_f32 v{32 + 8 * hh + e}, v{32 + 8 * hh + e}, v{64 + 8 * hh + e}')
        for e in range(8):
            p(f'v_fmac_f32 v{80 + e}, v{32 + 8 * hh + e}, v{GB + 8 * hh + e}')
        o = 88 + 4 * hh
        for i in range(4):
            p(f'v_cvt_pk_bf16_f32 v{o + i}, v{80 + 2 * i}, v{80 + 2 * i + 1}')
        p(f'buffer_store_dwordx4 {vr(o, 4)}, v9, s[44:47], s30 offen offset:{hh * 32}')
    p('Lgf_done:')
    p('s_endpgm')
    return p
```

```python
import struct
from asmgen import Prog, vr, ar, sr
from layout import *


def f2u(x):
    return struct.unpack('<I', struct.pack('<f', x))[0]


def srd(p, d, lo, hi, off, size):
    if off == 0:
        p(f's_mov_b32 s{d}, s{lo}\ns_mov_b32 s{d + 1}, s{hi}')
    else:
        p(f's_add_u32 s{d}, s{lo}, {off}\ns_addc_u32 s{d + 1}, s{hi}, 0')
    p(f's_mov_b32 s{d + 2}, {size}\ns_mov_b32 s{d + 3}, 0x20000')


def unpack8(p, src, dst):
    for i in range(4):
        p(f'v_lshlrev_b32 v{dst + 2 * i}, 16, v{src + i}')
        p(f'v_and_b32 v{dst + 2 * i + 1}, 0xffff0000, v{src + i}')


def round_bf16(p, r):
    p(f'v_cvt_pk_bf16_f32 v{r}, v{r}, v{r}')
    p(f'v_and_b32 v{r}, 0xffff0000, v{r}')


def build_mod():
    p = Prog('mod_kernel')
    p("""
    s_cmp_ge_u32 s2, 42
    s_cbranch_scc1 Lmod_done
    s_load_dwordx4 s[4:7], s[0:1], 80
    s_load_dwordx2 s[20:21], s[0:1], 112
    v_and_b32 v1, 7, v0
    v_lshrrev_b32 v2, 3, v0
    s_movk_i32 s3, 5376
    v_mul_lo_u32 v3, v2, s3
    v_lshl_add_u32 v3, v1, 4, v3
    v_lshlrev_b32 v4, 1, v2
    s_lshl_b32 s22, s2, 7
    s_waitcnt lgkmcnt(0)
    """)
    srd(p, 8, 4, 5, 0, 896)
    srd(p, 12, 6, 7, 0, 448 * 5376)
    srd(p, 16, 20, 21, WS_MOD, 2688 * 4)
    for i in range(14):
        p(f'buffer_load_ushort v{8 + i}, v4, s[8:11], 0 offen offset:{64 * i}')
    for i in range(14):
        p(f's_add_u32 s23, s22, {i * 32 * 5376}')
        p(f'buffer_load_dwordx4 {vr(24 + 4 * i, 4)}, v3, s[12:15], s23 offen')
    p(f's_mov_b32 s24, {f2u(-1.4426950408889634)}')
    for i in range(14):
        r = 8 + i
        p(f'v_lshlrev_b32 v{r}, 16, v{r}')
        p(f'v_mul_f32 v5, s24, v{r}')
        p(f'v_exp_f32 v5, v5')
        p(f'v_add_f32 v5, 1.0, v5')
        p(f'v_rcp_f32 v5, v5')
        p(f'v_mul_f32 v{r}, v{r}, v5')
        round_bf16(p, r)
    A = 80
    for i in range(14):
        unpack8(p, 24 + 4 * i, 88)
        for e in range(8):
            if i == 0:
                p(f'v_mul_f32 v{A + e}, v{8 + i}, v{88 + e}')
            else:
                p(f'v_fmac_f32 v{A + e}, v{8 + i}, v{88 + e}')
    p(f"""
    s_movk_i32 s3, 272
    v_mul_lo_u32 v5, v2, s3
    v_lshl_add_u32 v5, v1, 5, v5
    ds_write_b128 v5, {vr(A, 4)}
    ds_write_b128 v5, {vr(A + 4, 4)} offset:16
    s_waitcnt lgkmcnt(0)
    s_barrier
    v_cmp_gt_u32 vcc, 64, v0
    s_and_saveexec_b64 s[26:27], vcc
    s_cbranch_execz Lmod_done
    v_lshlrev_b32 v5, 2, v0
    """)
    for i in range(32):
        p(f'ds_read_b32 v{24 + i}, v5 offset:{272 * i}')
    for i in range(1, 32):
        p(f'v_add_f32 v24, v24, v{24 + i}')
    round_bf16(p, 24)
    p("""
    s_mov_b32 s3, 0
    s_cmp_ge_u32 s2, 7
    s_cselect_b32 s3, 1.0, s3
    s_cmp_ge_u32 s2, 14
    s_cselect_b32 s3, 0, s3
    s_cmp_ge_u32 s2, 28
    s_cselect_b32 s3, 1.0, s3
    s_cmp_ge_u32 s2, 35
    s_cselect_b32 s3, 0, s3
    v_add_f32 v24, s3, v24
    """)
    round_bf16(p, 24)
    p("""
    s_lshl_b32 s22, s2, 8
    buffer_store_dword v24, v5, s[16:19], s22 offen
    Lmod_done:
    s_endpgm
    """)
    return p


def reduce_stats(p, s1, s2, t):
    for r in (s1, s2):
        p(f'v_add_f32_dpp v{r}, v{r}, v{r} row_ror:8 row_mask:0xf bank_mask:0xf')
    for sw in ('v_permlane16_swap_b32', 'v_permlane32_swap_b32'):
        p(f'v_mov_b32 v{t}, v{s1}\nv_mov_b32 v{t + 1}, v{s2}')
        p(f'{sw} v{s1}, v{t}\n{sw} v{s2}, v{t + 1}')
        p(f'v_add_f32 v{s1}, v{s1}, v{t}\nv_add_f32 v{s2}, v{s2}, v{t + 1}')


def build_ln(mode):
    name = {'h': 'lnh_kernel', 'c': 'lnc_kernel', 'z': 'lnz_kernel'}[mode]
    p = Prog(name)
    NF = 896 if mode == 'z' else 448
    p(f"""
    s_cmp_ge_u32 s2, 256
    s_cbranch_scc1 L{name}_done
    s_load_dwordx2 s[4:5], s[0:1], 0
    s_load_dwordx2 s[6:7], s[0:1], 112
    v_and_b32 v1, 7, v0
    v_lshrrev_b32 v2, 3, v0
    s_and_b32 s3, s2, 3
    s_lshl_b32 s3, s3, 7
    v_lshlrev_b32 v3, 9, v2
    v_lshl_add_u32 v3, v1, 4, v3
    v_add_u32 v3, s3, v3
    s_lshr_b32 s22, s2, 2
    s_mul_i32 s22, s22, {NF * 64}
    s_movk_i32 s3, 896
    v_mul_lo_u32 v4, v1, s3
    v_lshl_add_u32 v4, v2, 4, v4
    s_mul_i32 s23, s2, {8 * 896}
    v_lshlrev_b32 v5, 5, v2
    s_waitcnt lgkmcnt(0)
    """)
    X = 16
    nval = 16 if mode == 'z' else 8
    if mode in 'hc':
        srd(p, 8, 4, 5, 0, 2048 * 896)
        srd(p, 12, 6, 7, WS_MOD, 2688 * 4)
        srd(p, 16, 6, 7, WS_H if mode == 'h' else WS_H2, 2048 * 896)
        if mode == 'c':
            srd(p, 24, 6, 7, WS_PART, 16 * 2048 * 896)
            srd(p, 28, 6, 7, WS_X1, 2048 * 896)
            for h in range(16):
                p(f's_add_u32 s3, s22, {h * 2048 * 896}')
                p(f'buffer_load_dwordx4 {vr(64 + 4 * h, 4)}, v3, s[24:27], s3 offen')
        p(f'buffer_load_dwordx4 {vr(8, 4)}, v4, s[8:11], s23 offen')
        seg = 0 if mode == 'h' else 3
        SH, SC, GA = 32, 40, 48
        p(f's_movk_i32 s32, {seg * 1792}\ns_movk_i32 s33, {(seg + 1) * 1792}\ns_movk_i32 s34, {2 * 1792}')
        for k in range(2):
            p(f'buffer_load_dwordx4 {vr(SH + 4 * k, 4)}, v5, s[12:15], s32 offen offset:{16 * k}')
            p(f'buffer_load_dwordx4 {vr(SC + 4 * k, 4)}, v5, s[12:15], s33 offen offset:{16 * k}')
            if mode == 'c':
                p(f'buffer_load_dwordx4 {vr(GA + 4 * k, 4)}, v5, s[12:15], s34 offen offset:{16 * k}')
        if mode == 'c':
            A = 24
            for h in range(16):
                if h == 0:
                    unpack8(p, 64, A)
                else:
                    unpack8(p, 64 + 4 * h, 56)
                    for e in range(8):
                        p(f'v_add_f32 v{A + e}, v{A + e}, v{56 + e}')
        unpack8(p, 8, X)
        if mode == 'c':
            for e in range(8):
                p(f'v_fmac_f32 v{X + e}, v{GA + e}, v{24 + e}')
            for i in range(4):
                p(f'v_cvt_pk_bf16_f32 v{8 + i}, v{X + 2 * i}, v{X + 2 * i + 1}')
            p(f'buffer_store_dwordx4 {vr(8, 4)}, v3, s[28:31], s22 offen')
            unpack8(p, 8, X)
    else:
        srd(p, 8, 6, 7, WS_Z2, 2048 * 1792)
        srd(p, 16, 6, 7, WS_Z2N, 2048 * 1792)
        p(f'buffer_load_dwordx4 {vr(8, 4)}, v3, s[8:11], s22 offen')
        p(f's_add_u32 s3, s22, {56 * 512}')
        p(f'buffer_load_dwordx4 {vr(12, 4)}, v3, s[8:11], s3 offen')
        p(f"""
        v_lshrrev_b32 v4, 2, v2
        v_lshlrev_b32 v4, 17, v4
        v_lshl_add_u32 v4, v1, 6, v4
        v_and_b32 v5, 3, v2
        v_lshl_add_u32 v4, v5, 4, v4
        s_lshl_b32 s23, s2, 9
        """)
        unpack8(p, 8, X)
        unpack8(p, 12, X + 8)
    S1, S2, T = 6, 7, 56
    p(f'v_add_f32 v{S1}, v{X}, v{X + 1}')
    p(f'v_mul_f32 v{S2}, v{X}, v{X}')
    p(f'v_fmac_f32 v{S2}, v{X + 1}, v{X + 1}')
    for e in range(2, nval):
        p(f'v_add_f32 v{S1}, v{S1}, v{X + e}')
        p(f'v_fmac_f32 v{S2}, v{X + e}, v{X + e}')
    reduce_stats(p, S1, S2, T)
    p(f"""
    v_lshrrev_b32 v{T}, 6, v0
    v_lshlrev_b32 v{T}, 6, v{T}
    v_lshl_add_u32 v{T}, v1, 3, v{T}
    ds_write_b64 v{T}, v[{S1}:{S2}]
    v_lshlrev_b32 v{T + 1}, 3, v1
    s_waitcnt lgkmcnt(0)
    s_barrier
    """)
    R = 64
    for w in range(7):
        p(f'ds_read_b64 {vr(R + 2 * w, 2)}, v{T + 1} offset:{64 * w}')
    for w in range(1, 7):
        p(f'v_add_f32 v{R}, v{R}, v{R + 2 * w}')
        p(f'v_add_f32 v{R + 1}, v{R + 1}, v{R + 2 * w + 1}')
    p(f"""
    v_mul_f32 v{R}, {f2u(1.0 / NF)}, v{R}
    v_mul_f32 v{R + 1}, {f2u(1.0 / NF)}, v{R + 1}
    v_fma_f32 v{R + 1}, -v{R}, v{R}, v{R + 1}
    v_max_f32 v{R + 1}, 0, v{R + 1}
    v_add_f32 v{R + 1}, {f2u(1e-5)}, v{R + 1}
    v_rsq_f32 v{R + 1}, v{R + 1}
    """)
    for e in range(nval):
        p(f'v_sub_f32 v{X + e}, v{X + e}, v{R}')
    for e in range(nval):
        p(f'v_mul_f32 v{X + e}, v{X + e}, v{R + 1}')
    if mode in 'hc':
        for e in range(8):
            p(f'v_fma_f32 v{X + e}, v{X + e}, v{40 + e}, v{32 + e}')
        for i in range(4):
            p(f'v_cvt_pk_bf16_f32 v{12 + i}, v{X + 2 * i}, v{X + 2 * i + 1}')
        p(f'buffer_store_dwordx4 {vr(12, 4)}, v3, s[16:19], s22 offen')
    else:
        for i in range(8):
            p(f'v_cvt_pk_bf16_f32 v{8 + i}, v{X + 2 * i}, v{X + 2 * i + 1}')
        p(f'buffer_store_dwordx4 {vr(8, 4)}, v4, s[16:19], s23 offen')
        p(f's_add_u32 s23, s23, {14 * 131072}')
        p(f'buffer_store_dwordx4 {vr(12, 4)}, v4, s[16:19], s23 offen')
    p(f'L{name}_done:')
    p('s_endpgm')
    return p
```

```python
import sys
sys.path.insert(0, 'work')
import gen, k_att, k_small, k_gemm
out = sys.argv[1] if len(sys.argv) > 1 else 'adaLN_cond__gqa_block_cached__mixer_gmlp__prompt.s'
ks = [
    (k_small.build_mod(), 42, 256, 8704),
    (k_small.build_ln('h'), 256, 448, 512),
    (k_att.build(), 256, 256, k_att.LDS_ATT),
    (k_small.build_ln('c'), 256, 448, 512),
    (k_gemm.build_d(), 224, 512, k_gemm.LDS_D),
    (k_small.build_ln('z'), 256, 448, 512),
    (k_gemm.build_e(), 224, 256, k_gemm.LDS_E),
    (k_gemm.build_f(), 224, 256, k_gemm.LDS_F),
]
gen.make(ks, out)
```
